```python
import torch

def _softmax(x, axis=-1):
    return torch.softmax(x, dim=axis)

def _gelu(x):
    return torch.nn.functional.gelu(x, approximate='tanh')

def _silu(x):
    return torch.nn.functional.silu(x)

def _sigmoid(x):
    return torch.sigmoid(x)

def _layernorm(x, axis=-1, eps=1e-05):
    m = x.mean(dim=axis, keepdim=True)
    v = x.var(dim=axis, keepdim=True, unbiased=False)
    return (x - m) / torch.sqrt(v + eps)

def _scatter_add(tgt, idx, src, axis=0):
    return tgt.clone().index_add_(axis, idx, src)

def _segment_sum(src, seg, n):
    out = torch.zeros((n,) + src.shape[1:], dtype=src.dtype)
    return out.index_add_(0, seg, src)

def _pad(x, pw):
    flat = tuple((v for pair in reversed(pw) for v in pair))
    return torch.nn.functional.pad(x, flat)
kernel_name = 'recurrent_scan__mha_block_cached__mixer_gmlp__prompt'

def setup_inputs():

    _w = lambda a: (lambda t: t.to(torch.bfloat16) if t.is_floating_point() else t)(torch.as_tensor(a))

    def _A_setup():
        B, Sq, D = (1, 2048, 640)
        H, Sk, Dh = (32, 2048, 128)
        return {'x': _w((lambda *s: torch.randn(*s, dtype=torch.bfloat16) * 0.05)(B, Sq, D)), 'k_cache': _w((lambda *s: torch.randn(*s, dtype=torch.bfloat16) * 0.8)(B, H, Sk, Dh)), 'v_cache': _w((lambda *s: torch.randn(*s, dtype=torch.bfloat16) * 0.2)(B, H, Sk, Dh)), 'wq': _w((lambda *s: torch.randn(*s, dtype=torch.bfloat16) * 0.8)(D, H * Dh) * D ** (-0.5)), 'wo': _w((lambda *s: torch.randn(*s, dtype=torch.bfloat16) * 0.2)(H * Dh, D) * (H * Dh) ** (-0.5))}
    _A_in = _A_setup()

    def _B_setup():
        B, S, D, F = (1, 2048, 640, 1728)
        Fh = F // 2
        return {'x': _w((lambda *s: torch.randn(*s, dtype=torch.bfloat16) * 0.05)(B, S, D)), 'w_in': _w((lambda *s: torch.randn(*s, dtype=torch.bfloat16) * 0.4)(D, 2 * Fh)), 'w_sp': _w(0.01 * (lambda *s: torch.randn(*s, dtype=torch.bfloat16) * 0.4)(S, S)), 'b_sp': _w(1.0 + 0.01 * (lambda *s: torch.randn(*s, dtype=torch.bfloat16) * 0.1)(S)), 'w_out': _w((lambda *s: torch.randn(*s, dtype=torch.bfloat16) * 0.1)(Fh, D))}
    _B_in = _B_setup()
    return {'A_x': _A_in['x'], 'A_k_cache': _A_in['k_cache'], 'A_v_cache': _A_in['v_cache'], 'A_wq': _A_in['wq'], 'A_wo': _A_in['wo'], 'B_x': _B_in['x'], 'B_w_in': _B_in['w_in'], 'B_w_sp': _B_in['w_sp'], 'B_b_sp': _B_in['b_sp'], 'B_w_out': _B_in['w_out']}

def reference(A_x, A_k_cache, A_v_cache, A_wq, A_wo, B_x, B_w_in, B_w_sp, B_b_sp, B_w_out):

    def _A_ref(x, k_cache, v_cache, wq, wo):
        B, Sq, D = x.shape
        H, Dh = (32, 128)
        q = (lambda x, *d: x.permute(*d))((x @ wq).reshape(B, Sq, H, Dh), 0, 2, 1, 3)
        scores = torch.einsum('bhqd,bhkd->bhqk', q, k_cache) * Dh ** (-0.5)
        p = _softmax(scores, axis=-1)
        o = torch.einsum('bhqk,bhkd->bhqd', p, v_cache)
        return (lambda x, *d: x.permute(*d))(o, 0, 2, 1, 3).reshape(B, Sq, H * Dh) @ wo

    def _B_ref(x, w_in, w_sp, b_sp, w_out):
        B, S, D = x.shape
        F = w_in.shape[-1]
        Fh = F // 2
        z = _gelu(torch.einsum('bsd,df->bsf', x, w_in))
        z1 = z[..., :Fh].clone()
        z2 = _layernorm(z[..., Fh:], axis=-1)
        g = torch.einsum('ts,bsf->btf', w_sp, z2) + b_sp[None, :, None]
        return torch.einsum('bsf,fd->bsd', z1 * g, w_out)
    x = A_x
    xn = _layernorm(x, axis=-1)
    s = _A_ref(xn, A_k_cache, A_v_cache, A_wq, A_wo)
    g = _silu(_B_ref(xn, B_w_in, B_w_sp, B_b_sp, B_w_out))
    return x + s * g
```

```python
import re

def vr(n, cnt=1):
    return f"v{n}" if cnt == 1 else f"v[{n}:{n+cnt-1}]"
def ar(n, cnt=1):
    return f"a{n}" if cnt == 1 else f"a[{n}:{n+cnt-1}]"
def sr(n, cnt=1):
    return f"s{n}" if cnt == 1 else f"s[{n}:{n+cnt-1}]"

class R:
    def __init__(self, kind, base, cnt=1):
        self.kind, self.base, self.cnt = kind, base, cnt
    def __str__(self):
        return (vr if self.kind == 'v' else ar)(self.base, self.cnt)
    def regs(self):
        return [(self.kind, self.base + i) for i in range(self.cnt)]
    def sub(self, off, cnt=1):
        assert off + cnt <= self.cnt
        return R(self.kind, self.base + off, cnt)

def V(b, c=1): return R('v', b, c)
def A(b, c=1): return R('a', b, c)

class Kern:
    def __init__(self, name):
        self.name = name
        self.lines = []
        self.vmq = []
        self.lgq = []
        self.slot = 0
        self.tag = {}
        self.mfma_w = {}
        self.valu_w = {}
        self.trans_w = {}
        self.mfma_c = {}
        self.pending_ld = {}
        self.check = True
        self.nlabel = 0

    def raw(self, s, slots=1):
        self.lines.append("    " + s)
        self.slot += slots
    def comment(self, s):
        self.lines.append("    ; " + s)
    def label(self, l):
        self.lines.append(l + ":")
    def newlabel(self, base="L"):
        self.nlabel += 1
        return f"{self.name}_{base}{self.nlabel}"
    def nop(self, n):
        while n > 0:
            k = min(n, 16)
            self.raw(f"s_nop {k-1}", slots=k)
            n -= k

    def _rd(self, r, tag=None, by='valu'):
        if not self.check or not isinstance(r, R): return
        for g in r.regs():
            if g in self.pending_ld:
                raise Exception(f"{self.name}: read of {g} with load in flight {self.pending_ld[g]}")
            if tag is not None:
                t = self.tag.get(g)
                if t != tag:
                    raise Exception(f"{self.name}: reg {g} has tag {t}, expected {tag}")
            if by in ('valu', 'mem') and g in self.mfma_w:
                d = self.slot - self.mfma_w[g] - 1
                if d < 12: raise Exception(f"{self.name}: MFMA->VALU/mem hazard on {g}: {d} states")
            if by == 'mfma_ab' and g in self.mfma_w:
                d = self.slot - self.mfma_w[g] - 1
                if d < 12: raise Exception(f"{self.name}: MFMA->MFMA A/B hazard on {g}: {d} states")
            if by in ('mfma_ab', 'mfma_c') and g in self.valu_w:
                d = self.slot - self.valu_w[g] - 1
                if d < 2: raise Exception(f"{self.name}: VALU->MFMA hazard on {g}: {d} states")
            if by == 'valu' and g in self.trans_w:
                d = self.slot - self.trans_w[g] - 1
                if d < 1: raise Exception(f"{self.name}: trans->VALU hazard on {g}")
    def _wr(self, r, tag=None, by='valu'):
        if not isinstance(r, R): return
        for g in r.regs():
            if self.check:
                if g in self.pending_ld:
                    raise Exception(f"{self.name}: write of {g} with load in flight {self.pending_ld[g]}")
                if by in ('valu', 'ld') and g in self.mfma_w:
                    d = self.slot - self.mfma_w[g] - 1
                    if d < 12: raise Exception(f"{self.name}: MFMA->write hazard (WAW) on {g}: {d}")
                if by == 'valu' and g in self.mfma_c:
                    d = self.slot - self.mfma_c[g] - 1
                    if d < 7: raise Exception(f"{self.name}: MFMA srcC WAR hazard on {g}: {d}")
            self.tag[g] = tag
            self.mfma_w.pop(g, None); self.valu_w.pop(g, None); self.trans_w.pop(g, None)
            if by == 'valu': self.valu_w[g] = self.slot
            if by == 'trans':
                self.valu_w[g] = self.slot; self.trans_w[g] = self.slot
            if by == 'mfma': self.mfma_w[g] = self.slot

    def mfma(self, D, Aop, Bop, C, tA=None, tB=None, tC=None, tD=None, op="v_mfma_f32_32x32x16_bf16"):
        self._rd(Aop, tA, 'mfma_ab'); self._rd(Bop, tB, 'mfma_ab')
        if isinstance(C, R):
            same = (C.kind == D.kind and C.base == D.base and C.cnt == D.cnt)
            if self.check:
                for g in C.regs():
                    if g in self.pending_ld: raise Exception(f"mfma C {g} load in flight")
                    if tC is not None and self.tag.get(g) != tC:
                        raise Exception(f"{self.name}: mfma C {g} tag {self.tag.get(g)} expected {tC}")
                    if g in self.valu_w and self.slot - self.valu_w[g] - 1 < 2:
                        raise Exception(f"VALU->MFMA C hazard {g}")
                    if (not same) and g in self.mfma_w and self.slot - self.mfma_w[g] - 1 < 10:
                        raise Exception(f"MFMA->MFMA C overlap hazard {g}")
            for g in C.regs(): self.mfma_c[g] = self.slot
        for g in D.regs():
            if self.check and g in self.pending_ld: raise Exception(f"mfma D {g} load in flight")
            self.tag[g] = tD
            self.valu_w.pop(g, None); self.trans_w.pop(g, None)
            self.mfma_w[g] = self.slot
        self.raw(f"{op} {D}, {Aop}, {Bop}, {C}")

    def valu(self, op, D, srcs, tD=None, tS=None, trans=False, extra=""):
        tS = tS or [None] * len(srcs)
        for s, t in zip(srcs, tS):
            self._rd(s, t, 'valu')
        self._wr(D, tD, 'trans' if trans else 'valu')
        self.raw(f"{op} {D}, " + ", ".join(str(s) for s in srcs) + extra)

    def ds_read(self, op, D, addr, off, tag, tD=None):
        self._wr(D, tD if tD is not None else tag, 'ld')
        for g in D.regs(): self.pending_ld[g] = ('lg', tag)
        self.lgq.append((tag, D))
        assert len(self.lgq) <= 15 or not self.check, "lgkm queue too deep"
        self.raw(f"{op} {D}, {addr} offset:{off}")

    def lds_op(self, s, tag):
        self.lgq.append((tag, None))
        self.raw(s)

    def vm_load(self, s, tag, D=None, tD=None):
        if D is not None:
            self._wr(D, tD if tD is not None else tag, 'ld')
            for g in D.regs(): self.pending_ld[g] = ('vm', tag)
        self.vmq.append((tag, D))
        assert len(self.vmq) <= 63 or not self.check, "vm queue too deep"
        self.raw(s)

    def _retire(self, q, n):
        k = len(q) - n
        for (t, D) in q[:k]:
            if D is not None:
                for g in D.regs():
                    self.pending_ld.pop(g, None)
        del q[:k]

    def wait_lg(self, tag):
        idx = [i for i, (t, D) in enumerate(self.lgq) if t == tag]
        if not idx: return False
        n = len(self.lgq) - 1 - idx[-1]
        self._retire(self.lgq, n)
        self.raw(f"s_waitcnt lgkmcnt({n})")
        return True
    def wait_vm(self, tag):
        idx = [i for i, (t, D) in enumerate(self.vmq) if t == tag]
        if not idx: return False
        n = len(self.vmq) - 1 - idx[-1]
        self._retire(self.vmq, n)
        self.raw(f"s_waitcnt vmcnt({n})")
        return True
    def wait_all(self, vm=True, lg=True):
        parts = []
        if vm: self._retire(self.vmq, 0); parts.append("vmcnt(0)")
        if lg: self._retire(self.lgq, 0); parts.append("lgkmcnt(0)")
        self.raw("s_waitcnt " + " ".join(parts))

    def srd(self, s, base_lo, base_hi, nbytes):
        self.raw(f"s_mov_b32 s{s}, s{base_lo}")
        self.raw(f"s_and_b32 s{s+1}, s{base_hi}, 0xffff")
        self.raw(f"s_mov_b32 s{s+2}, {nbytes}")
        self.raw(f"s_mov_b32 s{s+3}, 0x00020000")

    def text(self):
        return "\n".join(self.lines)

def kernel_text(k, nvgpr, nagpr, nsgpr=102):
    acc_off = max(4, (nvgpr + 3) // 4 * 4)
    nfv = acc_off + nagpr if nagpr else nvgpr
    head = f""".text
.globl {k.name}
.p2align 8
.type {k.name},@function
{k.name}:
"""
    desc = f"""
.section .rodata,"a"
.p2align 6
.amdhsa_kernel {k.name}
  .amdhsa_next_free_vgpr {nfv}
  .amdhsa_next_free_sgpr {nsgpr}
  .amdhsa_accum_offset {acc_off}
  .amdhsa_group_segment_fixed_size 0
  .amdhsa_kernarg_size 104
  .amdhsa_user_sgpr_count 2
  .amdhsa_user_sgpr_kernarg_segment_ptr 1
  .amdhsa_system_sgpr_workgroup_id_x 1
.end_amdhsa_kernel
"""
    return head + k.text() + "\n" + desc
```

```python
from asmlib import *
from layout import *

PD = 5
NFR = 8
THR = 0x45800000
QSCALE = 0x3e0293ee

vK = [2 + i for i in range(8)]
vV, vW0, vW1 = 10, 11, 12
vDK = [13, 14, 15, 16]
vDV, vDW = 17, 18
vX = [19, 20]
vO = [21, 22]
vL = [23, 24]
def vTS(b, qt): return 25 + 2 * b + qt
vT0, vT1, vT2 = 29, 30, 31
vE = [32 + i for i in range(8)]
vR = [40 + i for i in range(8)]
def S(b, qt): return V(64 + (2 * b + qt) * 16, 16)
def P(b, qt, s): return V(128 + ((2 * b + qt) * 2 + s) * 4, 4)
def NEGM(qt): return V(160 + 16 * qt, 16)
def XN(c, kk, qt): return V(64 + (c % 4) * 32 + (kk * 2 + qt) * 4, 4)
NVGPR = 192
def O(qt, T): return A((qt * 4 + T) * 16, 16)
def Q(qt, t): return A(128 + (qt * 8 + t) * 4, 4)
def FR(i): return A(192 + (i % NFR) * 4, 4)
NAGPR = 192 + NFR * 4
sK, sV, sW, sX, sO = 8, 12, 16, 20, 24
sWAVE, sHEAD, sQB, sW4K, sKOFF, sVOFF, sTMP, sCNT, sTHR, sSC = 28, 29, 30, 31, 32, 33, 34, 35, 36, 37
sRET = 40
PROFWG = 77

WSLOT = [4, 5, 6, 7, 0, 1, 2, 3, 4, 5]
def kslot(j): return j % 4
def vslot(j): return 4 + (j + 2) % 4

def gen_attn(prof=False):
    k = Kern("attn_kernel")
    nst = [0]
    def stamp():
        if not prof: return
        i = nst[0]; nst[0] += 1
        k.raw(f"s_memtime s[{60+4*i}:{61+4*i}]")
        k.raw(f"s_memrealtime s[{62+4*i}:{63+4*i}]")
    done = k.newlabel("done")
    k.raw("s_cmp_ge_u32 s2, 256")
    k.raw(f"s_cbranch_scc1 {done}")
    k.raw("s_load_dwordx4 s[44:47], s[0:1], 8")
    k.raw("s_load_dwordx2 s[48:49], s[0:1], 24")
    k.raw("s_load_dwordx2 s[50:51], s[0:1], 96")
    k.raw(f"s_and_b32 s{sHEAD}, s2, 7")
    k.raw(f"s_lshl_b32 s{sHEAD}, s{sHEAD}, 2")
    k.raw(f"s_bfe_u32 s{sTMP}, s2, 0x20003")
    k.raw(f"s_add_u32 s{sHEAD}, s{sHEAD}, s{sTMP}")
    k.raw(f"s_lshr_b32 s{sQB}, s2, 5")
    k.raw("v_lshrrev_b32 v1, 6, v0")
    k.raw("s_nop 0")
    k.raw(f"v_readfirstlane_b32 s{sWAVE}, v1")
    k.raw("v_and_b32 v0, 63, v0")
    k.raw(f"s_lshl_b32 s{sW4K}, s{sWAVE}, 12")
    k.raw(f"s_mov_b32 s{sTHR}, {THR}")
    k.raw(f"s_mov_b32 s{sSC}, {QSCALE}")
    k.raw("v_and_b32 v40, 31, v0")
    k.raw("v_lshrrev_b32 v41, 5, v0")
    k.raw("v_bfe_u32 v42, v0, 4, 1")
    k.raw("v_bfe_u32 v43, v0, 2, 2")
    k.raw("v_and_b32 v44, 3, v0")
    k.raw("v_lshrrev_b32 v45, 4, v0")
    k.raw("v_and_b32 v46, 15, v0")
    for t in range(8):
        k.raw(f"v_add_u32 v47, {2*t}, v41")
        k.raw("v_xor_b32 v47, v47, v46")
        k.raw("v_lshlrev_b32 v47, 4, v47")
        k.raw(f"v_lshl_add_u32 v{vK[t]}, v40, 8, v47")
    k.raw("v_lshlrev_b32 v47, 6, v43")
    k.raw("v_lshl_add_u32 v47, v42, 5, v47")
    k.raw("v_and_b32 v48, 1, v44")
    k.raw("v_lshl_add_u32 v47, v48, 4, v47")
    k.raw("v_lshrrev_b32 v48, 1, v44")
    k.raw("v_lshl_add_u32 v47, v48, 3, v47")
    k.raw(f"v_lshl_add_u32 v{vV}, v41, 10, v47")
    k.raw(f"v_add_u32 v{vV}, 0x10000, v{vV}")
    k.raw(f"v_lshl_add_u32 v{vW0}, v41, 11, v47")
    k.raw(f"v_add_u32 v{vW1}, 0x10000, v{vW0}")
    k.raw(f"s_lshl_b32 s{sTMP}, s{sWAVE}, 4")
    k.raw(f"v_add_u32 v47, s{sTMP}, v45")
    k.raw("v_lshlrev_b32 v47, 8, v47")
    for n in range(4):
        k.raw(f"v_add_u32 v48, {4*n}, v45")
        k.raw("v_xor_b32 v48, v48, v46")
        k.raw(f"v_lshl_add_u32 v{vDK[n]}, v48, 4, v47")
    k.raw(f"v_add_u32 v47, s{sTMP}, v43")
    k.raw("v_lshlrev_b32 v48, 6, v45")
    k.raw("v_lshl_add_u32 v48, v44, 4, v48")
    k.raw(f"v_lshl_add_u32 v{vDV}, v47, 8, v48")
    k.raw(f"v_lshl_add_u32 v{vDW}, v47, 13, v48")
    k.raw(f"s_lshl_b32 s{sTMP}, s{sHEAD}, 8")
    k.raw(f"v_add_u32 v{vDW}, s{sTMP}, v{vDW}")
    k.raw(f"s_lshl_b32 s{sCNT}, s{sQB}, 8")
    k.raw(f"s_lshl_b32 s{sKOFF}, s{sWAVE}, 6")
    k.raw(f"s_add_u32 s{sCNT}, s{sCNT}, s{sKOFF}")
    k.raw(f"v_add_u32 v47, s{sCNT}, v40")
    k.raw(f"v_mul_u32_u24 v{vX[0]}, 1280, v47")
    k.raw(f"v_lshl_add_u32 v{vX[0]}, v41, 4, v{vX[0]}")
    k.raw(f"v_add_u32 v{vX[1]}, 40960, v{vX[0]}")
    k.raw(f"v_lshlrev_b32 v{vO[0]}, 13, v47")
    k.raw(f"v_lshl_add_u32 v{vO[0]}, v41, 4, v{vO[0]}")
    k.raw(f"v_add_u32 v{vO[0]}, s{sTMP}, v{vO[0]}")
    k.raw(f"v_add_u32 v{vO[1]}, 0x40000, v{vO[0]}")
    k.raw("s_waitcnt lgkmcnt(0)")
    k.raw(f"s_lshl_b32 s{sTMP}, s{sHEAD}, 19")
    k.raw(f"s_add_u32 s44, s44, s{sTMP}")
    k.raw("s_addc_u32 s45, s45, 0")
    k.raw(f"s_add_u32 s46, s46, s{sTMP}")
    k.raw("s_addc_u32 s47, s47, 0")
    k.srd(sK, 44, 45, 524288)
    k.srd(sV, 46, 47, 524288)
    k.srd(sW, 48, 49, 5242880)
    k.raw(f"s_add_u32 s52, s50, {XN_OFF}")
    k.raw("s_addc_u32 s53, s51, 0")
    k.srd(sX, 52, 53, 2621440)
    k.raw(f"s_add_u32 s52, s50, {O_OFF}")
    k.raw("s_addc_u32 s53, s51, 0")
    k.srd(sO, 52, 53, 16777216)
    k.raw(f"s_mov_b32 s{sKOFF}, 0")
    k.raw(f"s_mov_b32 s{sVOFF}, 0")

    def dma_w(c):
        ops = []
        def first():
            k.raw(f"s_add_u32 m0, s{sW4K}, {WSLOT[c]*16384}")
        for n in range(4):
            def f(n=n):
                if n == 0: first()
                k.raw(f"s_mov_b32 s{sTMP}, {c*524288 + n*(32768-1024)}")
                k.vm_load(f"buffer_load_dwordx4 v{vDW}, s[{sW}:{sW+3}], s{sTMP} offen offset:{n*1024} lds", ('W', c))
            ops.append(f)
        return ops
    def dma_k(j):
        ops = []
        for n in range(4):
            def f(n=n):
                if n == 0:
                    k.raw(f"s_add_u32 m0, s{sW4K}, {kslot(j)*16384}")
                    k.raw("s_nop 0")
                k.vm_load(f"buffer_load_dwordx4 v{vDK[n]}, s[{sK}:{sK+3}], s{sKOFF} offen offset:{n*1024} lds", ('Kt', j))
                if n == 3:
                    k.raw(f"s_add_u32 s{sKOFF}, s{sKOFF}, 16384")
            ops.append(f)
        return ops
    def dma_v(j):
        ops = []
        for n in range(4):
            def f(n=n):
                if n == 0:
                    k.raw(f"s_add_u32 m0, s{sW4K}, {vslot(j)*16384}")
                    k.raw("s_nop 0")
                k.vm_load(f"buffer_load_dwordx4 v{vDV}, s[{sV}:{sV+3}], s{sVOFF} offen offset:{n*1024} lds", ('Vt', j))
                if n == 3:
                    k.raw(f"s_add_u32 s{sVOFF}, s{sVOFF}, 16384")
            ops.append(f)
        return ops
    def load_xn(c):
        for kk in range(4):
            for qt in range(2):
                D = XN(c, kk, qt)
                k.vm_load(f"buffer_load_dwordx4 {D}, v{vX[qt]}, s[{sX}:{sX+3}], 0 offen offset:{(64*c+16*kk)*2}", ('X', c), D, ('X', c, kk, qt))

    stamp()
    for c in range(3):
        load_xn(c)
        for f in dma_w(c): f()
    for c in range(3, 8):
        for f in dma_w(c): f()
    fctr = [0]
    wfr = [(c, kk, T) for c in range(10) for kk in range(4) for T in range(4)]
    frslot = {}
    def w_barrier(c):
        k.wait_vm(('W', c))
        k.raw("s_barrier")
        post = []
        if c == 2: post = dma_w(8)
        if c == 3: post = dma_w(9)
        if c == 4: post = dma_v(0)
        if c == 6: post = dma_k(0)
        if c == 7: post = dma_k(1)
        if c == 8: post = dma_k(2)
        for f in post: f()
    def read_w(i):
        c, kk, T = wfr[i]
        if kk == 0 and T == 0:
            w_barrier(c)
        D = FR(fctr[0]); frslot[('W', i)] = D; fctr[0] += 1
        sl = WSLOT[c]
        addr = vW0 if sl < 4 else vW1
        for j in range(2):
            off = (sl % 4) * 16384 + (4 * kk + j) * 1024 + T * 256
            k.ds_read("ds_read_b64_tr_b16", D.sub(2 * j, 2), f"v{addr}", off, ('Wf', i))
    for i in range(PD): read_w(i)
    for i in range(len(wfr)):
        c, kk, T = wfr[i]
        if kk == 0 and T == 0 and c + 3 <= 9 and c >= 1:
            load_xn(c + 3)
        if kk == 0 and T == 0 and c == 0:
            load_xn(3)
        if T == 0 and kk == 0:
            k.wait_vm(('X', c))
        k.wait_lg(('Wf', i))
        D = frslot[('W', i)]
        for qt in range(2):
            first = (c == 0 and kk == 0)
            k.mfma(O(qt, T), D, XN(c, kk, qt), 0 if first else O(qt, T), tA=('Wf', i), tB=('X', c, kk, qt))
            if qt == 0 and i + PD < len(wfr):
                read_w(i + PD)
    stamp()
    k.nop(12)
    for qt in range(2):
        for T in range(4):
            for pr in range(8):
                a0 = O(qt, T).base + 2 * pr
                t0, t1 = vE[(2 * pr) % 8], vE[(2 * pr + 1) % 8]
                k.raw(f"v_accvgpr_read_b32 v{t0}, a{a0}")
                k.raw(f"v_accvgpr_read_b32 v{t1}, a{a0+1}")
                k.raw(f"v_mul_f32 v{t0}, s{sSC}, v{t0}")
                k.raw(f"v_mul_f32 v{t1}, s{sSC}, v{t1}")
                k.raw(f"v_cvt_pk_bf16_f32 v{t0}, v{t0}, v{t1}")
                qd = Q(qt, 2 * T + pr // 4).base + pr % 4
                k.raw(f"v_accvgpr_write_b32 a{qd}, v{t0}")
    for i in range(128):
        k.raw(f"v_accvgpr_write_b32 a{i}, 0")
    for qt in range(2):
        k.raw(f"v_mov_b32 v{vL[qt]}, 0")
    k.mfma_w.clear(); k.valu_w.clear(); k.mfma_c.clear()

    NU = 64
    def has_qk(u): return 0 <= u + 1 < NU
    def has_sm(u): return 0 <= u < NU
    def has_pv(u): return 0 <= u - 1 < NU
    def frags(u):
        fl = []
        if has_qk(u): fl += [('K', u + 1, t) for t in range(8)]
        if has_pv(u): fl += [('V', u - 1, s, T) for s in range(2) for T in range(4)]
        return fl
    def read_frag(fr):
        D = FR(fctr[0]); frslot[fr] = D; fctr[0] += 1
        if fr[0] == 'K':
            _, uu, t = fr
            off = kslot(uu >> 1) * 16384 + (uu & 1) * 8192
            k.ds_read("ds_read_b128", D, f"v{vK[t]}", off, fr)
        else:
            _, uu, s, T = fr
            for j in range(2):
                off = (vslot(uu >> 1) - 4) * 16384 + (uu & 1) * 8192 + (4 * s + 2 * j) * 1024 + T * 256
                k.ds_read("ds_read_b64_tr_b16", D.sub(2 * j, 2), f"v{vV}", off, fr)
    stubs = []
    def kv_barrier(j):
        k.wait_vm(('Kt', j))
        k.wait_vm(('Vt', j - 1))
        k.raw("s_barrier")
    def period(u, in_loop=False):
        fl = frags(u)
        nm = 2 * len(fl)
        gaps = [[] for _ in range(nm)]
        b = u % 2
        nxt = frags(u + 1)
        for i in range(PD, len(fl) + PD):
            fr = fl[i] if i < len(fl) else (nxt[i - len(fl)] if i - len(fl) < len(nxt) else None)
            g = 2 * (i - PD)
            if i == len(fl) and u % 2 == 0 and u >= 0:
                j = u // 2 + 1
                gaps[g - 1].append(lambda j=j: kv_barrier(j))
                dm = []
                if in_loop or j + 3 <= 31: dm += dma_k(j + 3)
                if in_loop or j + 1 <= 31: dm += dma_v(j + 1)
                for n, f in enumerate(dm):
                    gaps[min(nm - 1, g + n)].append(f)
            if fr is not None:
                gaps[g].append(lambda fr=fr: read_frag(fr))
        if has_sm(u - 1):
            for qt in range(2):
                gaps[0].append(lambda qt=qt: k.valu("v_add_f32", V(vL[qt]), [V(vL[qt]), V(vTS(1 - b, qt))]))
        if has_sm(u):
            last = nm - 3
            for e in range(32):
                qt, r = e // 16, e % 16
                g = (e * (last + 1)) // 32
                te = vE[e % 8]
                gaps[g].append(lambda qt=qt, r=r, te=te: k.valu("v_exp_f32", V(te), [S(b, qt).sub(r)], tS=[('S', u, qt, 7)], trans=True))
                if r % 2 == 1:
                    tp = vE[(e - 1) % 8]
                    def fa(qt=qt, r=r, te=te, tp=tp):
                        ts = V(vTS(b, qt))
                        if r == 1:
                            k.valu("v_add_f32", ts, [V(tp), V(te)])
                        else:
                            k.valu("v_add_f32", ts, [ts, V(tp)])
                            k.valu("v_add_f32", ts, [ts, V(te)])
                        k.valu("v_cvt_pk_bf16_f32", P(b, qt, r // 8).sub((r % 8) // 2), [V(tp), V(te)], tD=('P', u, qt, r // 8))
                    gaps[g + 1].append(fa)
            def chk():
                k.valu("v_max_f32", V(vT0), [V(vTS(b, 0)), V(vTS(b, 1))])
                k.raw(f"v_cmp_lt_f32 vcc, s{sTHR}, v{vT0}")
            gaps[nm - 1].append(chk)
        mi = 0
        for i, fr in enumerate(fl):
            D = frslot[fr]
            for qt in range(2):
                if qt == 0: k.wait_lg(fr)
                if fr[0] == 'K':
                    _, uu, t = fr
                    sb = S(uu % 2, qt)
                    if t == 0:
                        C = 0 if uu == 0 else NEGM(qt)
                        k.mfma(sb, D, Q(qt, t), C, tA=fr, tD=('S', uu, qt, t))
                    else:
                        k.mfma(sb, D, Q(qt, t), sb, tA=fr, tC=('S', uu, qt, t - 1), tD=('S', uu, qt, t))
                else:
                    _, uu, s, T = fr
                    k.mfma(O(qt, T), D, P(uu % 2, qt, s), O(qt, T), tA=fr, tB=('P', uu, qt, s))
                for f in gaps[mi]: f()
                mi += 1
        if has_sm(u):
            stub, back = k.newlabel("rs"), k.newlabel("rb")
            k.raw(f"s_cbranch_vccnz {stub}")
            k.label(back)
            stubs.append((stub, back, b))

    stamp()
    kv_barrier(0)
    for f in dma_k(3) + dma_v(1): f()
    for i in range(PD): read_frag(frags(-1)[i])
    period(-1)
    k.nop(16)
    chk = k.check; k.check = False
    for qt in range(2):
        sb = S(0, qt).base
        k.raw(f"v_max3_f32 v{vR[0]}, v{sb}, v{sb+1}, v{sb+2}")
        for r in range(3, 15, 2):
            k.raw(f"v_max3_f32 v{vR[0]}, v{vR[0]}, v{sb+r}, v{sb+r+1}")
        k.raw(f"v_max_f32 v{vR[0]}, v{vR[0]}, v{sb+15}")
        k.raw(f"v_mov_b32 v{vR[1]}, v{vR[0]}")
        k.raw("s_nop 1")
        k.raw(f"v_permlane32_swap_b32 v{vR[0]}, v{vR[1]}")
        k.raw("s_nop 1")
        k.raw(f"v_max_f32 v{vR[0]}, v{vR[0]}, v{vR[1]}")
        for r in range(16):
            k.raw(f"v_sub_f32 v{sb+r}, v{sb+r}, v{vR[0]}")
            k.raw(f"v_sub_f32 v{NEGM(qt).base+r}, 0, v{vR[0]}")
    k.nop(2)
    k.check = chk
    k.mfma_w.clear(); k.valu_w.clear(); k.mfma_c.clear()
    period(0)
    stamp()
    k.raw(f"s_mov_b32 s{sCNT}, 7")
    loop = k.newlabel("loop")
    st0 = ([t for t, _ in k.vmq], [t for t, _ in k.lgq])
    k.label(loop)
    for u in range(1, 9):
        period(u, in_loop=True)
    k.raw(f"s_sub_u32 s{sCNT}, s{sCNT}, 1")
    k.raw(f"s_cmp_lg_u32 s{sCNT}, 0")
    k.raw(f"s_cbranch_scc1 {loop}")
    stamp()
    def sh(t, du):
        if not isinstance(t, tuple): return t
        if t[0] in ('K', 'V', 'S', 'P'): return (t[0], t[1] + du) + t[2:]
        if t[0] in ('Kt', 'Vt'): return (t[0], t[1] + du // 2)
        return t
    st1 = ([sh(t, -8) for t, _ in k.vmq], [sh(t, -8) for t, _ in k.lgq])
    assert st1[1] == st0[1], (st0, st1)
    assert st1[0][-len(st0[0]):] == st0[0] or st0[0][-len(st1[0]):] == st1[0], (st0, st1)
    k.vmq = [(sh(t, 48), D) for t, D in k.vmq]
    k.lgq = [(sh(t, 48), D) for t, D in k.lgq]
    k.tag = {g: sh(t, 48) for g, t in k.tag.items()}
    k.pending_ld = {g: (a, sh(t, 48)) for g, (a, t) in k.pending_ld.items()}
    for fr in list(frslot.keys()):
        if fr[0] in ('K', 'V'): frslot[sh(fr, 48)] = frslot[fr]
    for u in range(57, 65):
        period(u)

    k.check = False
    stamp()
    k.nop(16)
    for qt in range(2):
        k.raw(f"v_mov_b32 v{vT0}, v{vL[qt]}")
        k.raw("s_nop 1")
        k.raw(f"v_permlane32_swap_b32 v{vL[qt]}, v{vT0}")
        k.raw("s_nop 1")
        k.raw(f"v_add_f32 v{vL[qt]}, v{vL[qt]}, v{vT0}")
        k.raw(f"v_rcp_f32 v{vL[qt]}, v{vL[qt]}")
    grp = 0
    for qt in range(2):
        for T in range(4):
            for a1 in range(2):
                tb = 64 + (grp % 8) * 12
                a0 = O(qt, T).base + 8 * a1
                for i in range(8):
                    k.raw(f"v_accvgpr_read_b32 v{tb+i}, a{a0+i}")
                for i in range(8):
                    k.raw(f"v_mul_f32 v{tb+i}, v{tb+i}, v{vL[qt]}")
                for i in range(4):
                    k.raw(f"v_cvt_pk_bf16_f32 v{tb+8+i}, v{tb+2*i}, v{tb+2*i+1}")
                k.raw(f"buffer_store_dwordx4 v[{tb+8}:{tb+11}], v{vO[qt]}, s[{sO}:{sO+3}], 0 offen offset:{T*64+a1*32}")
                grp += 1
    if prof:
        k.raw("s_waitcnt vmcnt(0)")
        stamp()
        k.raw("s_load_dwordx2 s[52:53], s[0:1], 88")
        k.raw("s_waitcnt lgkmcnt(0)")
        k.srd(44, 52, 53, 256)
        k.raw(f"s_cmp_lg_u32 s2, {PROFWG}")
        k.raw(f"s_cbranch_scc1 {done}")
        k.raw(f"s_cmp_lg_u32 s{sWAVE}, 0")
        k.raw(f"s_cbranch_scc1 {done}")
        k.raw("v_mov_b32 v1, 0")
        for i in range(nst[0]):
            k.raw(f"v_mov_b32 v2, s{60+4*i}")
            k.raw(f"v_mov_b32 v3, s{62+4*i}")
            k.raw(f"buffer_store_dwordx2 v[2:3], v1, s[44:47], 0 offen offset:{8*i}")
            k.raw("s_nop 1")
    k.label(done)
    k.raw("s_endpgm")

    for (stub, back, b) in stubs:
        k.label(stub)
        k.raw(f"s_call_b64 s[{sRET}:{sRET+1}], attn_rare{b}")
        k.raw(f"s_branch {back}")
    for b in range(2):
        k.label(f"attn_rare{b}")
        k.nop(32)
        for qt in range(2):
            cur, nxt, ng = S(b, qt).base, S(1 - b, qt).base, NEGM(qt).base
            m, m2, f = vR[0], vR[1], vR[2]
            k.raw(f"v_max3_f32 v{m}, v{cur}, v{cur+1}, v{cur+2}")
            for r in range(3, 15, 2):
                k.raw(f"v_max3_f32 v{m}, v{m}, v{cur+r}, v{cur+r+1}")
            k.raw(f"v_max_f32 v{m}, v{m}, v{cur+15}")
            k.raw(f"v_mov_b32 v{m2}, v{m}")
            k.raw("s_nop 1")
            k.raw(f"v_permlane32_swap_b32 v{m}, v{m2}")
            k.raw("s_nop 1")
            k.raw(f"v_max_f32 v{m}, v{m}, v{m2}")
            k.raw(f"v_max_f32 v{m}, 0, v{m}")
            for r in range(16):
                k.raw(f"v_sub_f32 v{cur+r}, v{cur+r}, v{m}")
                k.raw(f"v_sub_f32 v{nxt+r}, v{nxt+r}, v{m}")
                k.raw(f"v_sub_f32 v{ng+r}, v{ng+r}, v{m}")
            k.raw(f"v_sub_f32 v{f}, 0, v{m}")
            k.raw(f"v_exp_f32 v{f}, v{f}")
            k.raw("s_nop 0")
            k.raw(f"v_mul_f32 v{vL[qt]}, v{vL[qt]}, v{f}")
            for T in range(4):
                for i in range(0, 16, 4):
                    a0 = O(qt, T).base + i
                    for j in range(4): k.raw(f"v_accvgpr_read_b32 v{vR[4+j]}, a{a0+j}")
                    for j in range(4): k.raw(f"v_mul_f32 v{vR[4+j]}, v{vR[4+j]}, v{f}")
                    for j in range(4): k.raw(f"v_accvgpr_write_b32 a{a0+j}, v{vR[4+j]}")
            ts = vTS(b, qt)
            for r in range(0, 16, 2):
                k.raw(f"v_exp_f32 v{vR[4]}, v{cur+r}")
                k.raw(f"v_exp_f32 v{vR[5]}, v{cur+r+1}")
                k.raw("s_nop 0")
                if r == 0:
                    k.raw(f"v_add_f32 v{ts}, v{vR[4]}, v{vR[5]}")
                else:
                    k.raw(f"v_add_f32 v{ts}, v{ts}, v{vR[4]}")
                    k.raw(f"v_add_f32 v{ts}, v{ts}, v{vR[5]}")
                k.raw(f"v_cvt_pk_bf16_f32 v{P(b, qt, r // 8).base + (r % 8) // 2}, v{vR[4]}, v{vR[5]}")
        k.nop(4)
        k.raw(f"s_setpc_b64 s[{sRET}:{sRET+1}]")
    return kernel_text(k, NVGPR, NAGPR, 102), "attn_kernel", (256, 1, 1), (256, 1, 1), 131072
```

```python
from asmlib import *
from layout import *

class G:
    def __init__(self, BM, BN, WGM, WGN, BK, NS, K, lda, ldb):
        self.BM, self.BN, self.WGM, self.WGN, self.BK, self.NS, self.K, self.lda, self.ldb = BM, BN, WGM, WGN, BK, NS, K, lda, ldb
        self.NW = WGM * WGN
        self.WM, self.WN = BM // WGM, BN // WGN
        assert self.WM % 32 == 0 and self.WN % 32 == 0
        self.MI, self.NI = self.WM // 32, self.WN // 32
        self.CPR = BK // 8
        self.ABYTES = BM * BK * 2
        self.BBYTES = BN * BK * 2
        self.STAGE = self.ABYTES + self.BBYTES
        self.NA = self.ABYTES // 1024
        self.NB = self.BBYTES // 1024
        assert self.ABYTES % 1024 == 0 and self.BBYTES % 1024 == 0
        assert self.NA % self.NW == 0 and self.NB % self.NW == 0, (self.NA, self.NB, self.NW)
        self.PA, self.PB = self.NA // self.NW, self.NB // self.NW
        self.NB32 = BN // 32
        assert K % BK == 0
        self.NST = K // BK
        self.KS = BK // 16
        self.LDS = self.STAGE * NS
        self.NACC = self.MI * self.NI * 16

def log2(x):
    r = x.bit_length() - 1
    assert 1 << r == x
    return r

def gemm_body(k, g, sA, sB, s_m0, s_n0, s_k0, s_wave, sT, vb, epilogue, tagp=""):
    sAO, sBO, sWM, sWN, sM0, sX = sT, sT + 1, sT + 2, sT + 3, sT + 4, sT + 5
    k.raw(f"s_lshr_b32 s{sWM}, s{s_wave}, {log2(g.WGN)}" if g.WGN > 1 else f"s_mov_b32 s{sWM}, s{s_wave}")
    k.raw(f"s_and_b32 s{sWN}, s{s_wave}, {g.WGN-1}")
    k.raw(f"s_mul_i32 s{sWM}, s{sWM}, {g.WM}")
    k.raw(f"s_mul_i32 s{sWN}, s{sWN}, {g.WN}")
    v = vb
    vDA = [v + i for i in range(g.PA)]; v += g.PA
    vDB = [v + i for i in range(g.PB)]; v += g.PB
    vRA = [v + i for i in range(g.KS)]; v += g.KS
    vRB = v; v += 1
    vt = [v + i for i in range(6)]; v += 6
    t0, t1, t2, t3, t4, t5 = vt
    lc = log2(g.CPR)
    def swz(dst, row):
        if g.CPR == 8:
            k.raw(f"v_bfe_u32 v{dst}, v{row}, 1, 3")
        else:
            k.raw(f"v_bfe_u32 v{dst}, v{row}, 2, 2")
    k.raw(f"s_mul_i32 s{sX}, s{s_wave}, {g.PA*64}")
    for s in range(g.PA):
        k.raw(f"v_add_u32 v{t0}, s{sX}, v0")
        if s: k.raw(f"v_add_u32 v{t0}, {64*s}, v{t0}")
        k.raw(f"v_lshrrev_b32 v{t1}, {lc}, v{t0}")
        k.raw(f"v_and_b32 v{t2}, {g.CPR-1}, v{t0}")
        swz(t3, t1)
        k.raw(f"v_xor_b32 v{t2}, v{t2}, v{t3}")
        k.raw(f"v_add_u32 v{t1}, s{s_m0}, v{t1}")
        k.raw(f"s_mov_b32 s{sM0}, {g.lda}")
        k.raw(f"v_mul_lo_u32 v{t1}, v{t1}, s{sM0}")
        k.raw(f"v_lshl_add_u32 v{vDA[s]}, v{t2}, 4, v{t1}")
    magic = (65536 + g.NB32 - 1) // g.NB32
    for br in range(4 * g.NB):
        assert (br * magic) >> 16 == br // g.NB32
    k.raw(f"s_mul_i32 s{sX}, s{s_wave}, {g.PB*4}")
    k.raw(f"v_bfe_u32 v{t4}, v0, 2, 2")
    k.raw(f"v_and_b32 v{t5}, 3, v0")
    for s in range(g.PB):
        k.raw(f"v_lshrrev_b32 v{t0}, 4, v0")
        k.raw(f"v_add_u32 v{t0}, s{sX}, v{t0}")
        if s: k.raw(f"v_add_u32 v{t0}, {4*s}, v{t0}")
        k.raw(f"v_mul_u32_u24 v{t1}, {magic}, v{t0}")
        k.raw(f"v_lshrrev_b32 v{t1}, 16, v{t1}")
        k.raw(f"v_mul_u32_u24 v{t2}, {g.NB32}, v{t1}")
        k.raw(f"v_sub_u32 v{t2}, v{t0}, v{t2}")
        k.raw(f"v_lshl_add_u32 v{t1}, v{t1}, 2, v{t4}")
        k.raw(f"s_mov_b32 s{sM0}, {g.ldb}")
        k.raw(f"v_mul_lo_u32 v{t1}, v{t1}, s{sM0}")
        k.raw(f"v_lshlrev_b32 v{t2}, 5, v{t2}")
        k.raw(f"v_lshl_add_u32 v{t2}, v{t5}, 3, v{t2}")
        k.raw(f"v_add_u32 v{t2}, s{s_n0}, v{t2}")
        k.raw(f"v_lshl_add_u32 v{vDB[s]}, v{t2}, 1, v{t1}")
    k.raw(f"v_and_b32 v{t0}, 31, v0")
    k.raw(f"v_add_u32 v{t0}, s{sWM}, v{t0}")
    k.raw(f"v_lshrrev_b32 v{t1}, 5, v0")
    swz(t3, t0)
    for kk in range(g.KS):
        k.raw(f"v_add_u32 v{t2}, {2*kk}, v{t1}")
        k.raw(f"v_xor_b32 v{t2}, v{t2}, v{t3}")
        k.raw(f"v_lshlrev_b32 v{t2}, 4, v{t2}")
        k.raw(f"v_lshl_add_u32 v{vRA[kk]}, v{t0}, {lc+4}, v{t2}")
    k.raw(f"v_lshlrev_b32 v{t2}, 6, v{t4}")
    k.raw(f"v_bfe_u32 v{t3}, v0, 4, 1")
    k.raw(f"v_lshl_add_u32 v{t2}, v{t3}, 5, v{t2}")
    k.raw(f"v_and_b32 v{t3}, 1, v{t5}")
    k.raw(f"v_lshl_add_u32 v{t2}, v{t3}, 4, v{t2}")
    k.raw(f"v_lshrrev_b32 v{t3}, 1, v{t5}")
    k.raw(f"v_lshl_add_u32 v{t2}, v{t3}, 3, v{t2}")
    k.raw(f"v_mul_u32_u24 v{t3}, {2*g.NB32*256}, v{t1}")
    k.raw(f"v_add_u32 v{t2}, v{t2}, v{t3}")
    k.raw(f"s_lshl_b32 s{sX}, s{sWN}, 3")
    k.raw(f"v_add_u32 v{t2}, s{sX}, v{t2}")
    k.raw(f"v_add_u32 v{vRB}, {g.ABYTES}, v{t2}")
    k.raw(f"s_lshl_b32 s{sAO}, s{s_k0}, 1")
    k.raw(f"s_mul_i32 s{sBO}, s{s_k0}, {g.ldb}")
    k.raw(f"s_mul_i32 s{sM0}, s{s_wave}, {g.PA*1024}")
    k.raw(f"s_mul_i32 s{sX}, s{s_wave}, {g.PB*1024}")
    k.raw(f"s_add_u32 s{sX}, s{sX}, {g.ABYTES}")

    nbase = (g.LDS + 65535) // 65536
    vRAx = [vRA]; vRBx = [vRB]
    for bidx in range(1, nbase):
        ra = [v + i for i in range(g.KS)]; v += g.KS
        rb = v; v += 1
        for kk in range(g.KS):
            k.raw(f"v_add_u32 v{ra[kk]}, {65536*bidx}, v{vRA[kk]}")
        k.raw(f"v_add_u32 v{rb}, {65536*bidx}, v{vRB}")
        vRAx.append(ra); vRBx.append(rb)

    def dma(st):
        ops = []
        base = (st % g.NS) * g.STAGE
        for s in range(g.PA):
            def f(s=s):
                k.raw(f"s_add_u32 m0, s{sM0}, {base + s*1024}")
                k.raw("s_nop 0")
                k.vm_load(f"buffer_load_dwordx4 v{vDA[s]}, s[{sA}:{sA+3}], s{sAO} offen lds", (tagp + 'D', st))
                if s == g.PA - 1: k.raw(f"s_add_u32 s{sAO}, s{sAO}, {g.BK*2}")
            ops.append(f)
        for s in range(g.PB):
            def f(s=s):
                k.raw(f"s_add_u32 m0, s{sX}, {base + s*1024}")
                k.raw("s_nop 0")
                k.vm_load(f"buffer_load_dwordx4 v{vDB[s]}, s[{sB}:{sB+3}], s{sBO} offen lds", (tagp + 'D', st))
                if s == g.PB - 1: k.raw(f"s_add_u32 s{sBO}, s{sBO}, {g.BK*g.ldb}")
            ops.append(f)
        return ops

    acc = [[A((ni * g.MI + mi) * 16, 16) for mi in range(g.MI)] for ni in range(g.NI)]
    fb = g.NACC
    NF = g.MI + g.NI
    def FB(q, mi): return A(fb + ((q % 2) * NF + mi) * 4, 4)
    def FA(q, ni): return A(fb + ((q % 2) * NF + g.MI + ni) * 4, 4)
    nagpr = fb + 2 * NF * 4
    NQ = g.NST * g.KS
    def reads(q):
        st, kk = q // g.KS, q % g.KS
        base = (st % g.NS) * g.STAGE
        ops = []
        def rb(mi):
            off = base + mi * 32 * g.CPR * 16
            k.ds_read("ds_read_b128", FB(q, mi), f"v{vRAx[off >> 16][kk]}", off & 0xffff, (tagp + 'fb', q, mi))
        def ra(ni, j):
            off = base + ((4 * kk + j) * g.NB32 + ni) * 256
            bi = off >> 16
            k.ds_read("ds_read_b64_tr_b16", FA(q, ni).sub(2 * j, 2), f"v{vRBx[bi]}", off & 0xffff, (tagp + 'fa', q, ni))
        order = []
        for i in range(max(g.MI, g.NI)):
            if i < g.NI: order.append(('a', i))
            if i < g.MI: order.append(('b', i))
        for (t, i) in order:
            if t == 'b': ops.append(lambda i=i: rb(i))
            else:
                ops.append(lambda i=i: ra(i, 0)); ops.append(lambda i=i: ra(i, 1))
        return ops
    def stage_barrier(st):
        k.wait_vm((tagp + 'D', st))
        k.raw("s_barrier")

    for st in range(min(g.NS - 1, g.NST)):
        for f in dma(st): f()
    stage_barrier(0)
    for f in reads(0): f()
    for q in range(NQ):
        st, kk = q // g.KS, q % g.KS
        nm = g.MI * g.NI
        fill = []
        if q + 1 < NQ:
            if (q + 1) % g.KS == 0:
                fill.append(lambda st=st: stage_barrier(st + 1))
            rd = reads(q + 1)
            if (q + 1) % g.KS == 0 and st + g.NS - 1 < g.NST and st >= 0:
                dm = dma(st + g.NS - 1)
            else:
                dm = []
            fill += rd + dm
        per = (len(fill) + nm - 1) // nm if fill else 0
        per = max(per, 2)
        idx = 0; mi_ = 0
        for ni in range(g.NI):
            for mi in range(g.MI):
                k.wait_lg((tagp + 'fa', q, ni)); k.wait_lg((tagp + 'fb', q, mi))
                C = 0 if q == 0 else acc[ni][mi]
                k.mfma(acc[ni][mi], FA(q, ni), FB(q, mi), C, tA=(tagp + 'fa', q, ni), tB=(tagp + 'fb', q, mi))
                mi_ += 1
                n = per if mi_ < nm else len(fill) - idx
                for f in fill[idx:idx + n]: f()
                idx += n
    k.nop(16)
    epilogue(acc, sWM, sWN, v)
    return nagpr
```

```python
from asmlib import *
from layout import *
from k_gemm import *
import struct, math
def f32(x): return "0x%08x" % struct.unpack('<I', struct.pack('<f', x))[0]
LOG2E = math.log2(math.e)

def prologue(k, nwg):
    done = k.newlabel("done")
    k.raw(f"s_cmp_ge_u32 s2, {nwg}")
    k.raw(f"s_cbranch_scc1 {done}")
    k.raw("v_lshrrev_b32 v1, 6, v0")
    k.raw("s_nop 0")
    k.raw("v_readfirstlane_b32 s28, v1")
    k.raw("v_and_b32 v0, 63, v0")
    return done

def row_addr(k, vd, vt, s_m0, s_n0, sWM, sWN, ldc, eshift, sx):
    k.raw(f"s_add_u32 s{sx}, s{s_m0}, s{sWM}")
    k.raw(f"v_and_b32 v{vd}, 31, v0")
    k.raw(f"v_add_u32 v{vd}, s{sx}, v{vd}")
    k.raw(f"s_mov_b32 s{sx}, {ldc}")
    k.raw(f"v_mul_lo_u32 v{vd}, v{vd}, s{sx}")
    k.raw(f"s_add_u32 s{sx}, s{s_n0}, s{sWN}")
    k.raw(f"v_lshrrev_b32 v{vt}, 5, v0")
    k.raw(f"v_lshlrev_b32 v{vt}, 3, v{vt}")
    k.raw(f"v_add_u32 v{vt}, s{sx}, v{vt}")
    k.raw(f"v_lshl_add_u32 v{vd}, v{vt}, {eshift}, v{vd}")

def ws_srd(k, s, off, size, sws=50):
    k.raw(f"s_add_u32 s52, s{sws}, {off}")
    k.raw(f"s_addc_u32 s53, s{sws+1}, 0")
    k.srd(s, 52, 53, size)

def gen_z(BM=128, BN=96, WGM=4, WGN=1, NS=4):
    g = G(BM, BN, WGM, WGN, 64, NS, 640, 1280, 3456)
    MT, NT = 2048 // BM, 1728 // BN
    k = Kern("zgemm_kernel")
    done = prologue(k, MT * NT)
    k.raw("s_load_dwordx2 s[48:49], s[0:1], 48")
    k.raw("s_load_dwordx2 s[50:51], s[0:1], 96")
    k.raw(f"s_and_b32 s29, s2, {MT-1}")
    k.raw(f"s_lshr_b32 s30, s2, {log2(MT)}")
    k.raw(f"s_mul_i32 s29, s29, {BM}")
    k.raw(f"s_mul_i32 s30, s30, {BN}")
    k.raw("s_mov_b32 s31, 0")
    k.raw("s_waitcnt lgkmcnt(0)")
    ws_srd(k, 8, XN_OFF, 2621440)
    k.srd(12, 48, 49, 640 * 3456)
    ws_srd(k, 16, Z_OFF, 2048 * 3456)
    c0 = -2.0 * LOG2E * math.sqrt(2.0 / math.pi)
    c1 = c0 * 0.044715
    def epi(acc, sWM, sWN, vb):
        k.check = False
        vd, vt = vb, vb + 1
        row_addr(k, vd, vt, 29, 30, sWM, sWN, 3456, 1, 40)
        k.raw(f"s_mov_b32 s41, {f32(c1)}")
        k.raw(f"v_mov_b32 v{vt}, {f32(c0)}")
        grp = 0
        for mi in range(g.MI):
            k.raw(f"s_mov_b32 s40, {mi*32*3456}")
            for ni in range(g.NI):
                for a1 in range(2):
                    tb = vb + 4 + (grp % 4) * 20
                    tb += tb % 2
                    x, t, pk = tb, tb + 8, tb + 16
                    a0 = acc[ni][mi].base + 8 * a1
                    for i in range(8): k.raw(f"v_accvgpr_read_b32 v{x+i}, a{a0+i}")
                    for i in range(8): k.raw(f"v_mul_f32 v{t+i}, v{x+i}, v{x+i}")
                    for i in range(8): k.raw(f"v_fma_f32 v{t+i}, v{t+i}, s41, v{vt}")
                    for i in range(8): k.raw(f"v_mul_f32 v{t+i}, v{t+i}, v{x+i}")
                    for i in range(8): k.raw(f"v_exp_f32 v{t+i}, v{t+i}")
                    for i in range(8): k.raw(f"v_add_f32 v{t+i}, 1.0, v{t+i}")
                    for i in range(8): k.raw(f"v_rcp_f32 v{t+i}, v{t+i}")
                    for i in range(8): k.raw(f"v_mul_f32 v{x+i}, v{x+i}, v{t+i}")
                    for i in range(4): k.raw(f"v_cvt_pk_bf16_f32 v{pk+i}, v{x+2*i}, v{x+2*i+1}")
                    k.raw(f"buffer_store_dwordx4 v[{pk}:{pk+3}], v{vd}, s[16:19], s40 offen offset:{(32*ni+16*a1)*2}")
                    grp += 1
    na = gemm_body(k, g, 8, 12, 29, 30, 31, 28, 32, 2, epi)
    k.label(done)
    k.raw("s_endpgm")
    return kernel_text(k, 128, na, 64), k.name, (MT * NT, 1, 1), (64 * g.NW, 1, 1), g.LDS

NSPLIT = 2
def gen_mid():
    gg = G(256, 96, 4, 1, 64, 3, 2048, 4096, 1728)
    go = G(128, 128, 2, 2, 64, 4, 4096 // NSPLIT, 8192, 1280)
    NG = (2048 // gg.BM) * (864 // gg.BN)
    NO = (2048 // go.BM) * (640 // go.BN) * NSPLIT
    k = Kern("mid_kernel")
    done = prologue(k, NG + NO)
    k.raw("s_load_dwordx2 s[44:45], s[0:1], 32")
    k.raw("s_load_dwordx4 s[56:59], s[0:1], 56")
    k.raw("s_load_dwordx2 s[50:51], s[0:1], 96")
    lo = k.newlabel("oproj")
    k.raw(f"s_cmp_ge_u32 s2, {NG}")
    k.raw(f"s_cbranch_scc1 {lo}")
    k.raw("s_and_b32 s29, s2, 7")
    k.raw("s_lshr_b32 s30, s2, 3")
    k.raw(f"s_mul_i32 s29, s29, {gg.BM}")
    k.raw(f"s_mul_i32 s30, s30, {gg.BN}")
    k.raw("s_mov_b32 s31, 0")
    k.raw("s_waitcnt lgkmcnt(0)")
    k.srd(8, 56, 57, 2048 * 4096)
    ws_srd(k, 12, Z2N_OFF, 2048 * 1728)
    ws_srd(k, 16, U_OFF, 2048 * 1728)
    ws_srd(k, 20, Z_OFF, 2048 * 3456)
    k.srd(24, 58, 59, 4096)
    def epi_g(acc, sWM, sWN, vb):
        g = gg
        k.check = False
        vd, vt, vz, vbias = vb, vb + 1, vb + 2, vb + 3
        row_addr(k, vd, vt, 29, 30, sWM, sWN, 1728, 1, 40)
        row_addr(k, vz, vt, 29, 30, sWM, sWN, 3456, 1, 40)
        k.raw(f"s_add_u32 s40, s29, s{sWM}")
        k.raw(f"v_and_b32 v{vt}, 31, v0")
        k.raw(f"v_add_u32 v{vt}, s40, v{vt}")
        k.raw(f"v_lshlrev_b32 v{vt}, 1, v{vt}")
        for mi in range(g.MI):
            k.raw(f"buffer_load_ushort v{vbias+mi}, v{vt}, s[24:27], 0 offen offset:{64*mi}")
        zb = vb + 8
        zb += zb % 2
        idx = 0
        for mi in range(g.MI):
            k.raw(f"s_mov_b32 s40, {mi*32*3456}")
            for ni in range(g.NI):
                for a1 in range(2):
                    k.raw(f"buffer_load_dwordx4 v[{zb+4*idx}:{zb+4*idx+3}], v{vz}, s[20:23], s40 offen offset:{(32*ni+16*a1)*2}")
                    idx += 1
        tb0 = zb + 4 * idx
        k.raw("s_waitcnt vmcnt(0)")
        for mi in range(g.MI):
            k.raw(f"v_lshlrev_b32 v{vbias+mi}, 16, v{vbias+mi}")
        idx = 0
        for mi in range(g.MI):
            k.raw(f"s_mov_b32 s40, {mi*32*1728}")
            for ni in range(g.NI):
                for a1 in range(2):
                    tb = tb0 + (idx % 4) * 16
                    x, z = tb, tb + 8
                    zr = zb + 4 * idx
                    a0 = acc[ni][mi].base + 8 * a1
                    for i in range(8): k.raw(f"v_accvgpr_read_b32 v{x+i}, a{a0+i}")
                    for i in range(8): k.raw(f"v_add_f32 v{x+i}, v{x+i}, v{vbias+mi}")
                    for i in range(4):
                        k.raw(f"v_lshlrev_b32 v{z+2*i}, 16, v{zr+i}")
                        k.raw(f"v_and_b32 v{z+2*i+1}, 0xffff0000, v{zr+i}")
                    for i in range(8): k.raw(f"v_mul_f32 v{x+i}, v{x+i}, v{z+i}")
                    for i in range(4): k.raw(f"v_cvt_pk_bf16_f32 v{zr+i}, v{x+2*i}, v{x+2*i+1}")
                    k.raw(f"buffer_store_dwordx4 v[{zr}:{zr+3}], v{vd}, s[16:19], s40 offen offset:{(32*ni+16*a1)*2}")
                    idx += 1
    na1 = gemm_body(k, gg, 8, 12, 29, 30, 31, 28, 32, 2, epi_g, tagp="g")
    k.raw("s_endpgm")
    k.label(lo)
    k.vmq = []; k.lgq = []; k.pending_ld = {}; k.tag = {}; k.mfma_w = {}; k.valu_w = {}; k.mfma_c = {}; k.check = True
    k.raw(f"s_sub_u32 s3, s2, {NG}")
    k.raw("s_and_b32 s29, s3, 15")
    k.raw("s_lshr_b32 s30, s3, 4")
    k.raw("s_cmp_ge_u32 s30, 5")
    k.raw("s_cselect_b32 s42, 1, 0")
    k.raw("s_mul_i32 s31, s42, 5")
    k.raw("s_sub_u32 s30, s30, s31")
    k.raw(f"s_mul_i32 s29, s29, {go.BM}")
    k.raw(f"s_mul_i32 s30, s30, {go.BN}")
    k.raw(f"s_mul_i32 s31, s42, {go.K}")
    k.raw("s_waitcnt lgkmcnt(0)")
    ws_srd(k, 8, O_OFF, 2048 * 8192)
    k.srd(12, 44, 45, 4096 * 1280)
    ws_srd(k, 16, S_OFF, NSPLIT * 2048 * 2560)
    def epi_o(acc, sWM, sWN, vb):
        g = go
        k.check = False
        vd, vt = vb, vb + 1
        row_addr(k, vd, vt, 29, 30, sWM, sWN, 2560, 2, 40)
        k.raw(f"s_mul_i32 s43, s42, {2048*2560}")
        for mi in range(g.MI):
            k.raw(f"s_add_u32 s40, s43, {mi*32*2560}")
            for ni in range(g.NI):
                for a1 in range(2):
                    a0 = acc[ni][mi].base + 8 * a1
                    k.raw(f"buffer_store_dwordx4 a[{a0}:{a0+3}], v{vd}, s[16:19], s40 offen offset:{(32*ni+16*a1)*4}")
                    k.raw(f"buffer_store_dwordx4 a[{a0+4}:{a0+7}], v{vd}, s[16:19], s40 offen offset:{(32*ni+16*a1)*4+16}")
    na2 = gemm_body(k, go, 8, 12, 29, 30, 31, 28, 32, 2, epi_o, tagp="o")
    k.label(done)
    k.raw("s_endpgm")
    return kernel_text(k, 160, max(na1, na2), 64), k.name, (NG + NO, 1, 1), (256, 1, 1), max(gg.LDS, go.LDS)

def gen_fin(BM=64, BN=64, WGM=2, WGN=2, NS=6):
    g = G(BM, BN, WGM, WGN, 32, NS, 864, 1728, 1280)
    MT, NT = 2048 // BM, 640 // BN
    k = Kern("fin_kernel")
    done = prologue(k, MT * NT)
    k.raw("s_load_dwordx2 s[44:45], s[0:1], 0")
    k.raw("s_load_dwordx4 s[56:59], s[0:1], 72")
    k.raw("s_load_dwordx2 s[50:51], s[0:1], 96")
    k.raw(f"s_and_b32 s29, s2, {MT-1}")
    k.raw(f"s_lshr_b32 s30, s2, {log2(MT)}")
    k.raw(f"s_mul_i32 s29, s29, {BM}")
    k.raw(f"s_mul_i32 s30, s30, {BN}")
    k.raw("s_mov_b32 s31, 0")
    k.raw("s_waitcnt lgkmcnt(0)")
    ws_srd(k, 8, U_OFF, 2048 * 1728)
    k.srd(12, 56, 57, 864 * 1280)
    k.srd(16, 58, 59, 2621440)
    ws_srd(k, 20, S_OFF, NSPLIT * 2048 * 2560)
    k.srd(24, 44, 45, 2621440)
    def epi(acc, sWM, sWN, vb):
        k.check = False
        vd, vt, vs = vb, vb + 1, vb + 2
        row_addr(k, vd, vt, 29, 30, sWM, sWN, 1280, 1, 40)
        row_addr(k, vs, vt, 29, 30, sWM, sWN, 2560, 2, 40)
        k.raw(f"s_mov_b32 s41, {f32(-LOG2E)}")
        b0 = vb + 4
        b0 += b0 % 2
        per = 4 + 8 * NSPLIT
        idx = 0
        for mi in range(g.MI):
            for ni in range(g.NI):
                for a1 in range(2):
                    r = b0 + per * idx
                    k.raw(f"s_mov_b32 s40, {mi*32*1280}")
                    k.raw(f"buffer_load_dwordx4 v[{r}:{r+3}], v{vd}, s[24:27], s40 offen offset:{(32*ni+16*a1)*2}")
                    for sp in range(NSPLIT):
                        k.raw(f"s_mov_b32 s40, {mi*32*2560 + sp*2048*2560}")
                        k.raw(f"buffer_load_dwordx4 v[{r+4+8*sp}:{r+7+8*sp}], v{vs}, s[20:23], s40 offen offset:{(32*ni+16*a1)*4}")
                        k.raw(f"buffer_load_dwordx4 v[{r+8+8*sp}:{r+11+8*sp}], v{vs}, s[20:23], s40 offen offset:{(32*ni+16*a1)*4+16}")
                    idx += 1
        tb = b0 + per * idx
        x, t = tb, tb + 8
        k.raw("s_waitcnt vmcnt(0)")
        idx = 0
        for mi in range(g.MI):
            k.raw(f"s_mov_b32 s40, {mi*32*1280}")
            for ni in range(g.NI):
                for a1 in range(2):
                    r = b0 + per * idx
                    a0 = acc[ni][mi].base + 8 * a1
                    for i in range(8): k.raw(f"v_accvgpr_read_b32 v{x+i}, a{a0+i}")
                    for i in range(8): k.raw(f"v_mul_f32 v{t+i}, s41, v{x+i}")
                    for i in range(8): k.raw(f"v_exp_f32 v{t+i}, v{t+i}")
                    for i in range(8): k.raw(f"v_add_f32 v{t+i}, 1.0, v{t+i}")
                    for i in range(8): k.raw(f"v_rcp_f32 v{t+i}, v{t+i}")
                    for i in range(8): k.raw(f"v_mul_f32 v{x+i}, v{x+i}, v{t+i}")
                    for sp in range(1, NSPLIT):
                        for i in range(8): k.raw(f"v_add_f32 v{r+4+i}, v{r+4+i}, v{r+4+8*sp+i}")
                    for i in range(4):
                        k.raw(f"v_lshlrev_b32 v{t+2*i}, 16, v{r+i}")
                        k.raw(f"v_and_b32 v{t+2*i+1}, 0xffff0000, v{r+i}")
                    for i in range(8): k.raw(f"v_fma_f32 v{x+i}, v{x+i}, v{r+4+i}, v{t+i}")
                    for i in range(4): k.raw(f"v_cvt_pk_bf16_f32 v{r+i}, v{x+2*i}, v{x+2*i+1}")
                    k.raw(f"buffer_store_dwordx4 v[{r}:{r+3}], v{vd}, s[16:19], s40 offen offset:{(32*ni+16*a1)*2}")
                    idx += 1
    na = gemm_body(k, g, 8, 12, 29, 30, 31, 28, 32, 2, epi)
    k.label(done)
    k.raw("s_endpgm")
    return kernel_text(k, 128, na, 64), k.name, (MT * NT, 1, 1), (64 * g.NW, 1, 1), g.LDS
```

```python
from asmlib import *
from layout import *

def bf16r(k, d, s):
    k.raw(f"v_cvt_pk_bf16_f32 v{d}, v{s}, v{s}")
    k.raw(f"v_and_b32 v{d}, 0xffff0000, v{d}")

def dpp_sum16(k, v):
    for r in (8, 4, 2, 1):
        k.raw("s_nop 1")
        k.raw(f"v_add_f32_dpp v{v}, v{v}, v{v} row_ror:{r} row_mask:0xf bank_mask:0xf")

def ln_stats_to_scale(k, vsum_var, vmean):
    bf16r(k, vmean, vmean)
    bf16r(k, vsum_var, vsum_var)
    k.raw(f"v_add_f32 v{vsum_var}, 0x3727c5ac, v{vsum_var}")
    bf16r(k, vsum_var, vsum_var)
    k.raw(f"v_sqrt_f32 v{vsum_var}, v{vsum_var}")
    k.raw("s_nop 0")
    bf16r(k, vsum_var, vsum_var)
    k.raw(f"v_rcp_f32 v{vsum_var}, v{vsum_var}")
    k.raw("s_nop 0")

def gen_lnx():
    k = Kern("lnx_kernel")
    k.check = False
    done = k.newlabel("done")
    k.raw("s_cmp_ge_u32 s2, 128")
    k.raw(f"s_cbranch_scc1 {done}")
    k.raw("s_load_dwordx2 s[4:5], s[0:1], 0")
    k.raw("s_load_dwordx2 s[6:7], s[0:1], 96")
    k.raw("v_lshrrev_b32 v1, 4, v0")
    k.raw("s_lshl_b32 s3, s2, 4")
    k.raw("v_add_u32 v1, s3, v1")
    k.raw("v_and_b32 v2, 15, v0")
    k.raw("v_mul_u32_u24 v1, 1280, v1")
    k.raw("v_lshl_add_u32 v1, v2, 4, v1")
    k.raw("s_waitcnt lgkmcnt(0)")
    k.srd(8, 4, 5, 2621440)
    k.raw(f"s_add_u32 s6, s6, {XN_OFF}")
    k.raw("s_addc_u32 s7, s7, 0")
    k.srd(12, 6, 7, 2621440)
    for i in range(5):
        k.raw(f"buffer_load_dwordx4 v[{4+4*i}:{7+4*i}], v1, s[8:11], 0 offen offset:{256*i}")
    F = 32
    k.raw("v_mov_b32 v2, 0")
    for i in range(5):
        k.raw(f"s_waitcnt vmcnt({4-i})")
        for j in range(4):
            src = 4 + 4 * i + j
            k.raw(f"v_lshlrev_b32 v{F+8*i+2*j}, 16, v{src}")
            k.raw(f"v_and_b32 v{F+8*i+2*j+1}, 0xffff0000, v{src}")
        for j in range(8):
            k.raw(f"v_add_f32 v2, v2, v{F+8*i+j}")
    dpp_sum16(k, 2)
    k.raw("v_mul_f32 v2, 0x3acccccd, v2")
    k.raw("v_mov_b32 v3, 0")
    for e in range(40):
        k.raw(f"v_sub_f32 v80, v{F+e}, v2")
        k.raw("v_fmac_f32 v3, v80, v80")
    dpp_sum16(k, 3)
    k.raw("v_mul_f32 v3, 0x3acccccd, v3")
    ln_stats_to_scale(k, 3, 2)
    for i in range(5):
        for j in range(4):
            a, b = F + 8 * i + 2 * j, F + 8 * i + 2 * j + 1
            k.raw(f"v_sub_f32 v{a}, v{a}, v2")
            k.raw(f"v_sub_f32 v{b}, v{b}, v2")
            k.raw(f"v_cvt_pk_bf16_f32 v80, v{a}, v{b}")
            k.raw(f"v_lshlrev_b32 v{a}, 16, v80")
            k.raw(f"v_and_b32 v{b}, 0xffff0000, v80")
            k.raw(f"v_mul_f32 v{a}, v{a}, v3")
            k.raw(f"v_mul_f32 v{b}, v{b}, v3")
            k.raw(f"v_cvt_pk_bf16_f32 v{4+4*i+j}, v{a}, v{b}")
        k.raw(f"buffer_store_dwordx4 v[{4+4*i}:{7+4*i}], v1, s[12:15], 0 offen offset:{256*i}")
    k.label(done)
    k.raw("s_endpgm")
    return kernel_text(k, 84, 0, 32), "lnx_kernel", (128, 1, 1), (256, 1, 1), 0

def wave_sum64(k, v, st):
    dpp_sum16(k, v)
    k.raw("s_nop 0")
    for i in range(4):
        k.raw(f"v_readlane_b32 s{st+i}, v{v}, {16*i}")
    k.raw("s_nop 1")
    k.raw(f"v_mov_b32 v{v}, s{st}")
    for i in range(1, 4):
        k.raw(f"v_add_f32 v{v}, s{st+i}, v{v}")

def gen_lnz():
    k = Kern("lnz_kernel")
    k.check = False
    done = k.newlabel("done")
    k.raw("s_cmp_ge_u32 s2, 512")
    k.raw(f"s_cbranch_scc1 {done}")
    k.raw("s_load_dwordx2 s[6:7], s[0:1], 96")
    k.raw("v_lshrrev_b32 v1, 6, v0")
    k.raw("s_lshl_b32 s3, s2, 2")
    k.raw("v_add_u32 v1, s3, v1")
    k.raw("v_and_b32 v0, 63, v0")
    k.raw("v_mul_u32_u24 v2, 3456, v1")
    k.raw("v_lshl_add_u32 v2, v0, 5, v2")
    k.raw("v_add_u32 v2, 1728, v2")
    k.raw("v_mul_u32_u24 v3, 1728, v1")
    k.raw("v_lshl_add_u32 v3, v0, 5, v3")
    k.raw("s_waitcnt lgkmcnt(0)")
    k.raw(f"s_add_u32 s4, s6, {Z_OFF}")
    k.raw("s_addc_u32 s5, s7, 0")
    k.srd(8, 4, 5, 2048 * 3456)
    k.raw(f"s_add_u32 s4, s6, {Z2N_OFF}")
    k.raw("s_addc_u32 s5, s7, 0")
    k.srd(12, 4, 5, 2048 * 1728)
    k.raw("v_mov_b32 v4, 0")
    k.raw("v_mov_b32 v5, 0")
    k.raw("v_cmp_gt_u32 vcc, 54, v0")
    k.raw("s_and_saveexec_b64 s[20:21], vcc")
    k.raw("buffer_load_dwordx4 v[8:11], v2, s[8:11], 0 offen")
    k.raw("buffer_load_dwordx4 v[12:15], v2, s[8:11], 0 offen offset:16")
    F = 16
    k.raw("s_waitcnt vmcnt(0)")
    for j in range(8):
        k.raw(f"v_lshlrev_b32 v{F+2*j}, 16, v{8+j}")
        k.raw(f"v_and_b32 v{F+2*j+1}, 0xffff0000, v{8+j}")
    for e in range(16):
        k.raw(f"v_add_f32 v4, v4, v{F+e}")
    k.raw("s_mov_b64 exec, s[20:21]")
    wave_sum64(k, 4, 24)
    k.raw("v_mul_f32 v4, 0x3a97b426, v4")
    k.raw("s_and_saveexec_b64 s[20:21], vcc")
    for e in range(16):
        k.raw(f"v_sub_f32 v6, v{F+e}, v4")
        k.raw("v_fmac_f32 v5, v6, v6")
    k.raw("s_mov_b64 exec, s[20:21]")
    wave_sum64(k, 5, 24)
    k.raw("v_mul_f32 v5, 0x3a97b426, v5")
    ln_stats_to_scale(k, 5, 4)
    k.raw("s_and_saveexec_b64 s[20:21], vcc")
    for j in range(8):
        a, b = F + 2 * j, F + 2 * j + 1
        k.raw(f"v_sub_f32 v{a}, v{a}, v4")
        k.raw(f"v_sub_f32 v{b}, v{b}, v4")
        k.raw(f"v_cvt_pk_bf16_f32 v6, v{a}, v{b}")
        k.raw(f"v_lshlrev_b32 v{a}, 16, v6")
        k.raw(f"v_and_b32 v{b}, 0xffff0000, v6")
        k.raw(f"v_mul_f32 v{a}, v{a}, v5")
        k.raw(f"v_mul_f32 v{b}, v{b}, v5")
        k.raw(f"v_cvt_pk_bf16_f32 v{8+j}, v{a}, v{b}")
    k.raw("buffer_store_dwordx4 v[8:11], v3, s[12:15], 0 offen")
    k.raw("buffer_store_dwordx4 v[12:15], v3, s[12:15], 0 offen offset:16")
    k.label(done)
    k.raw("s_endpgm")
    return kernel_text(k, 40, 0, 32), "lnz_kernel", (512, 1, 1), (256, 1, 1), 0
```

```python
import sys, json
from layout import *
import k_ln, k_attn, k_gemms
def build(kernels, path):
    hdr = "; generated by work/gen.py\n"
    for (txt, name, g, b, lds) in kernels:
        hdr += f"; @launch kernel={name} grid=({g[0]},{g[1]},{g[2]}) block=({b[0]},{b[1]},{b[2]}) lds={lds}\n"
    body = '.amdgcn_target "amdgcn-amd-amdhsa--gfx950"\n'
    seen = set()
    for (txt, name, g, b, lds) in kernels:
        if name in seen: continue
        seen.add(name)
        body += txt + "\n"
    open(path, "w").write(hdr + body)
if __name__ == "__main__":
    ks = [k_ln.gen_lnx(), k_gemms.gen_z(), k_ln.gen_lnz(), k_attn.gen_attn(prof=("prof" in sys.argv)), k_gemms.gen_mid(), k_gemms.gen_fin()]
    build(ks, sys.argv[1] if len(sys.argv) > 1 else "k.s")
    json.dump({"xn": [XN_OFF, [2048, 640], "bf16"], "o": [O_OFF, [2048, 4096], "bf16"], "z": [Z_OFF, [2048, 1728], "bf16"],
               "z2n": [Z2N_OFF, [2048, 864], "bf16"], "u": [U_OFF, [2048, 864], "bf16"], "s": [S_OFF, [k_gemms.NSPLIT, 2048, 640], "f32"]}, open("layout.json", "w"))
```
